```python
import torch

def _softmax(x, axis=-1):
    return torch.softmax(x, dim=axis)
def _gelu(x):
    return torch.nn.functional.gelu(x, approximate="tanh")
def _silu(x):
    return torch.nn.functional.silu(x)
def _sigmoid(x):
    return torch.sigmoid(x)
def _layernorm(x, axis=-1, eps=1e-5):
    m = x.mean(dim=axis, keepdim=True)
    v = x.var(dim=axis, keepdim=True, unbiased=False)
    return (x - m) / torch.sqrt(v + eps)
def _scatter_add(tgt, idx, src, axis=0):
    return tgt.clone().index_add_(axis, idx, src)
def _segment_sum(src, seg, n):
    out = torch.zeros((n,) + src.shape[1:], dtype=src.dtype)
    return out.index_add_(0, seg, src)
def _pad(x, pw):
    flat = tuple(v for pair in reversed(pw) for v in pair)
    return torch.nn.functional.pad(x, flat)

kernel_name = 'sequential_preLN__sliding_block__glu_gated_glu__prompt'

def setup_inputs():

    _w = (lambda a: (lambda t: t.to(torch.bfloat16) if t.is_floating_point() else t)(torch.as_tensor(a)))
    def _A_setup():
        B, S, D = 1, 2048, 1024
        return {
            "x": _w((lambda *s: torch.randn(*s, dtype=torch.bfloat16) * 0.05)(B, S, D)),
            "wqkv": _w((lambda *s: torch.randn(*s, dtype=torch.bfloat16) * 0.05)(D, 3 * D)),
            "wo": _w((lambda *s: torch.randn(*s, dtype=torch.bfloat16) * 0.05)(D, D)),
        }
    _A_in = _A_setup()

    def _B_setup():
        B, S, D, F = 1, 2048, 1024, 3584
        return {
            "x": _w((lambda *s: torch.randn(*s, dtype=torch.bfloat16) * 0.05)(B, S, D)),
            "w_gate": _w((lambda *s: torch.randn(*s, dtype=torch.bfloat16) * 0.05)(D, F)),
            "w_up": _w((lambda *s: torch.randn(*s, dtype=torch.bfloat16) * 0.05)(D, F)),
            "w_down": _w((lambda *s: torch.randn(*s, dtype=torch.bfloat16) * 0.05)(F, D)),
        }
    _B_in = _B_setup()

    return {
        "A_x": _A_in["x"],
        "A_wqkv": _A_in["wqkv"],
        "A_wo": _A_in["wo"],
        "B_x": _B_in["x"],
        "B_w_gate": _B_in["w_gate"],
        "B_w_up": _B_in["w_up"],
        "B_w_down": _B_in["w_down"],
    }

def reference(A_x, A_wqkv, A_wo, B_x, B_w_gate, B_w_up, B_w_down):
    def _A_ref(x, wqkv, wo):
        B, S, D = x.shape
        H = 32; Dh = D // H; W = 256
        qkv = (lambda x, *d: x.permute(*d))((x @ wqkv).reshape(B, S, 3, H, Dh), 2, 0, 3, 1, 4)
        q, k, v = qkv[0], qkv[1], qkv[2]
        scores = torch.einsum("bhqd,bhkd->bhqk", q, k) * (Dh ** -0.5)
        idx = torch.arange(S)
        mask = (idx[:, None] - idx[None, :] >= 0) & (idx[:, None] - idx[None, :] < W)
        scores = torch.where(mask[None, None], scores, -1e9)
        p = _softmax(scores, axis=-1)
        o = torch.einsum("bhqk,bhkd->bhqd", p, v)
        return (lambda x, *d: x.permute(*d))(o, 0, 2, 1, 3).reshape(B, S, D) @ wo

    def _B_ref(x, w_gate, w_up, w_down):
        g = torch.einsum("bsd,df->bsf", x, w_gate)
        u = torch.einsum("bsd,df->bsf", x, w_up)
        h = _sigmoid(g) * u
        return torch.einsum("bsf,fd->bsd", h, w_down)

    x = A_x
    h = x + _A_ref(_layernorm(x, axis=-1), A_wqkv, A_wo)
    h2 = h + _B_ref(_layernorm(h, axis=-1), B_w_gate, B_w_up, B_w_down)
    return h2
```

```python
import sys, math
from asmlib import *
from stream import Stream

KB = 1024; MB = 1024 * 1024
CSTR = 4352
WS_CNT = 0; WS_XN = 2 * MB; WS_KV = 6 * MB; WS_O = 14 * MB; WS_HC = 18 * MB
WS_VAR = 22 * MB; WS_XM = 22 * MB + 256 * KB; WS_WB = 22 * MB + 512 * KB; WS_HH = 24 * MB; WS_DBG = 40 * MB
C0, C2, C3, C4, CW, F1 = 0, 16, 48, 64, 96, 128
NCNT = 384
sACT, sW, sST, sCNT, sM2 = 8, 12, 16, 20, 24
sM1 = 4
sWV, sMB, sNB, sMB4, sNB4, sLOOP = 28, 29, 30, 31, 32, 33
sT = 34
P_X, P_WQKV, P_WO, P_BX, P_WG, P_WU, P_WD, P_OUT, P_DBG, P_WS = [64 + 2 * i for i in range(10)]
sSTAMP = 84
vLANE = 255; vL16 = 254; vONE = 253; vZERO = 252
vRB = 248
U = [0, 32 * KB, 64 * KB, 96 * KB, 128 * KB]
NEG = 0xf149f2ca
MF = "v_mfma_f32_16x16x32_bf16"

def vr(k, n, c=4): return "%s[%d:%d]" % (k, n, n + c - 1)

class G:
    def __init__(self, name, first=0, last=5, stamps=False, opt=None):
        self.name = name; self.first = first; self.last = last; self.stamps = stamps
        self.o = dict(opt or {})
        self.S = Stream(); self.nlab = 0; self.nst = 0
    def lab(self, b):
        self.nlab += 1; return "%s_%s%d" % (self.name, b, self.nlab)
    def stamp(self):
        if self.stamps:
            k = self.nst; p = 60 + 2 * (k & 1)
            if k >= 2: self.S("s_mov_b32 s%d, s%d" % (sSTAMP + k - 2, p))
            self.S.stamp(p); self.nst += 1
    def sync_on(self, ph):
        return self.first < ph
    def srd(self, d, ptr, off=None, size=0, const=0):
        S = self.S
        if off is None and const == 0:
            S("s_mov_b32 s%d, s%d" % (d, ptr)); S("s_mov_b32 s%d, s%d" % (d + 1, ptr + 1))
        elif off is None:
            S("s_add_u32 s%d, s%d, 0x%x" % (d, ptr, const)); S("s_addc_u32 s%d, s%d, 0" % (d + 1, ptr + 1))
        else:
            if const: S("s_add_u32 s%d, s%d, 0x%x" % (off, off, const))
            S("s_add_u32 s%d, s%d, s%d" % (d, ptr, off)); S("s_addc_u32 s%d, s%d, 0" % (d + 1, ptr + 1))
        if isinstance(size, str): S("s_mov_b32 s%d, %s" % (d + 2, size))
        else: S("s_mov_b32 s%d, 0x%x" % (d + 2, size))
        S("s_mov_b32 s%d, 0x20000" % (d + 3))
    def signal(self, soff):
        S = self.S; l = self.lab("sig")
        S("s_cmp_lg_u32 s%d, 0" % sWV); S("s_cbranch_scc1 %s" % l)
        S("s_mov_b64 exec, 1")
        S.u("buffer_atomic_add v%d, v%d, s[%d:%d], s%d offen sc1" % (vONE, vZERO, sCNT, sCNT + 3, soff))
        S("s_mov_b64 exec, -1")
        S(l + ":")
    def poll(self, soff, expect, vtmp, vaddr=None, srd=None, mask=1, vexp=None, allwaves=True, track=True):
        S = self.S; l = self.lab("poll"); srd = sCNT if srd is None else srd
        vaddr = vZERO if vaddr is None else vaddr
        if not allwaves:
            S("s_cmp_lg_u32 s%d, 0" % sWV); S("s_cbranch_scc1 %s_x" % l)
        S("s_mov_b64 exec, %d" % mask)
        S("s_mov_b32 s3, 0x40000")
        S(l + ":")
        S.u("buffer_load_dword v%d, v%d, s[%d:%d], %s offen sc1" % (vtmp, vaddr, srd, srd + 3, "s%d" % soff if soff is not None else "0"))
        S("s_sub_u32 s3, s3, 1")
        S("s_cbranch_scc1 %s_y" % l)
        S("s_waitcnt vmcnt(0)")
        if vexp is None: S("v_cmp_gt_u32 vcc, %d, v%d" % (expect, vtmp))
        else: S("v_cmp_gt_u32 vcc, v%d, v%d" % (vexp, vtmp))
        S("s_cbranch_vccz %s_y" % l)
        S("s_sleep 1")
        S("s_branch %s" % l)
        S(l + "_y:")
        S("s_waitcnt vmcnt(0)")
        S("s_mov_b64 exec, -1")
        S(l + "_x:")
        if allwaves and track:
            S.vmdone = S.vm; S.log.append(('wait', S.vmdone, S.lgdone))
    def xor16(self, op, v, t):
        S = self.S
        S("v_mov_b32 v%d, v%d" % (t, v)); S("v_permlane16_swap_b32 v%d, v%d" % (v, t)); S("%s v%d, v%d, v%d" % (op, v, v, t))
    def xor32(self, op, v, t):
        S = self.S
        S("v_mov_b32 v%d, v%d" % (t, v)); S("v_permlane32_swap_b32 v%d, v%d" % (v, t)); S("%s v%d, v%d, v%d" % (op, v, v, t))

    def setup(self):
        S = self.S
        S("s_load_dwordx16 s[64:79], s[0:1], 0")
        S("s_load_dwordx4 s[80:83], s[0:1], 64")
        S("s_cmp_ge_u32 s2, 256")
        S("s_cbranch_scc1 %s_done" % self.name)
        self.stamp()
        S("v_and_b32 v%d, 63, v0" % vLANE)
        S("v_lshrrev_b32 v1, 6, v0")
        S("v_lshlrev_b32 v%d, 4, v%d" % (vL16, vLANE))
        S("v_readfirstlane_b32 s%d, v1" % sWV)
        S("v_mov_b32 v%d, 1" % vONE)
        S("v_mov_b32 v%d, 0" % vZERO)
        S("s_and_b32 s34, s2, 7"); S("s_lshr_b32 s35, s2, 3")
        S("s_lshr_b32 s36, s34, 1"); S("s_and_b32 s37, s34, 1")
        S("s_lshl_b32 s38, s36, 2"); S("s_and_b32 s39, s35, 3"); S("s_add_u32 s%d, s38, s39" % sMB)
        S("s_lshl_b32 s38, s37, 3"); S("s_lshr_b32 s39, s35, 2"); S("s_add_u32 s%d, s38, s39" % sNB)
        S("s_lshl_b32 s38, s36, 1"); S("s_and_b32 s39, s35, 1"); S("s_add_u32 s%d, s38, s39" % sMB4)
        S("s_lshl_b32 s38, s37, 4"); S("s_lshr_b32 s39, s35, 1"); S("s_add_u32 s%d, s38, s39" % sNB4)
        S("v_lshrrev_b32 v1, 5, v%d" % vLANE); S("v_lshlrev_b32 v1, 11, v1")
        S("v_bfe_u32 v2, v%d, 2, 3" % vLANE); S("v_lshl_add_u32 v1, v2, 7, v1")
        S("v_and_b32 v3, 3, v%d" % vLANE); S("v_lshl_add_u32 v1, v3, 3, v1")
        S("v_bfe_u32 v2, v%d, 3, 2" % vLANE)
        for f in range(4):
            S("v_xor_b32 v3, %d, v2" % f); S("v_lshl_add_u32 v%d, v3, 5, v1" % (vRB + f))
        S.wait_lg0()
        self.srd(sCNT, P_WS, size=2 * MB)
        if self.first > 0: self.pretouch()
    def pretouch(self):
        gran = self.o.get('touch', 0)
        if not gran: return
        S = self.S
        S("s_lshr_b32 s34, s2, 3"); S("s_lshl_b32 s34, s34, 2"); S("s_add_u32 s34, s34, s%d" % sWV)
        S("v_lshlrev_b32 v75, 7, v%d" % vLANE); S("s_mov_b32 s35, %d" % gran); S("v_add_u32 v75, s34, v75"); S("v_mul_lo_u32 v75, v75, s35")
        for ptr, size in ((P_WS, 40 * MB), (P_WQKV, 6 * MB), (P_WO, 2 * MB), (P_WG, 7 * MB), (P_WU, 7 * MB), (P_WD, 7 * MB), (P_OUT, 4 * MB), (P_X, 4 * MB)):
            self.srd(sM1, ptr, size=size)
            S.u("buffer_load_dword v74, v75, s[%d:%d], 0 offen" % (sM1, sM1 + 3))
    def wdma_off(self, dst, rowbytes, natural, t1, t2):
        S = self.S
        S("v_lshrrev_b32 v%d, 3, v%d" % (t1, vLANE))
        if natural:
            S("v_and_b32 v%d, 4, v%d" % (t2, t1)); S("v_add_u32 v%d, v%d, v%d" % (t1, t1, t2))
            S("s_and_b32 s34, s%d, 1" % sWV); S("s_lshl_b32 s34, s34, 4")
            S("s_lshr_b32 s35, s%d, 1" % sWV); S("s_lshl_b32 s35, s35, 2"); S("s_add_u32 s34, s34, s35")
        else:
            S("s_lshl_b32 s34, s%d, 3" % sWV)
        S("v_add_u32 v%d, s34, v%d" % (t1, t1))
        S("v_mul_u32_u24 v%d, %d, v%d" % (t1, rowbytes, t1))
        S("v_lshrrev_b32 v%d, 4, v%d" % (t2, vLANE)); S("v_lshlrev_b32 v%d, 1, v%d" % (t2, t2))
        S("v_and_b32 v%d, 7, v%d" % (dst, vLANE)); S("v_xor_b32 v%d, v%d, v%d" % (dst, dst, t2))
        S("v_lshl_add_u32 v%d, v%d, 4, v%d" % (dst, dst, t1))

    P1_SLOT = [U[3], U[4], U[2], U[0], U[1], U[3], U[4], U[2]]
    def p1_wsetup(self):
        S = self.S
        self.vWD = 247
        self.wdma_off(self.vWD, 6144, True, 72, 73)
        S("s_lshl_b32 s35, s%d, 7" % sNB); S("s_sub_u32 s36, %d, s35" % (1024 * 6144))
        self.srd(sW, P_WQKV, off=35, size="s36")
        S("s_lshl_b32 s40, s%d, 11" % sWV)
        S("s_mov_b32 s41, 2048"); S("s_mov_b32 s42, 3072")
        S("s_mov_b32 s43, 0"); S("s_mov_b32 s44, %d" % (32 * 6144 - 1024))
        self.p1_dma_id = {}
    def p1_dma(self, i):
        S = self.S
        if i >= 96: return
        u, h = divmod(i, 2)
        if u < 32: base = self.P1_SLOT[u >> 2] + (u & 3) * 8192; so = 41 + h; step = 32 * 6144
        else:
            d = u - 32; st = d >> 1
            base = (U[0] if st < 4 else U[3]) + (st & 3) * 16384 + (d & 1) * 8192; so = 43 + h; step = 64 * 6144
        if h == 0: S("s_add_u32 m0, s40, %d" % base)
        else: S("s_add_u32 s%d, s%d, %d" % (so - 1, so - 1, step))
        self.p1_dma_id[i] = S.lds_fill("buffer_load_dwordx4 v%d, s[%d:%d], s%d offen offset:%d lds" % (self.vWD, sW, sW + 3, so, 1024 * h),
                                       base, base + 8192) if h == 1 else \
            S.lds_fill("buffer_load_dwordx4 v%d, s[%d:%d], s%d offen lds" % (self.vWD, sW, sW + 3, so), base, base + 8192)
        if h == 1: S("s_add_u32 s%d, s%d, %d" % (so, so, step))

    def p0(self):
        S = self.S
        S("s_lshl_b32 s34, s%d, 4" % sMB); S("s_add_u32 s34, s34, s%d" % sNB); S("s_lshl_b32 s45, s34, 3")
        S("s_lshl_b32 s34, s34, 14")
        self.srd(sM1, P_X, off=34, size=16384)
        S("v_and_b32 v1, 7, v%d" % vLANE); S("v_lshrrev_b32 v2, 3, v%d" % vLANE)
        S("v_lshlrev_b32 v3, 11, v1"); S("v_lshl_add_u32 v3, v2, 4, v3")
        S("s_lshl_b32 s35, s%d, 9" % sWV)
        for j in range(4):
            S("buffer_load_dwordx4 %s, v3, s[%d:%d], s35 offen offset:%d" % (vr('v', 8 + 4 * j), sM1, sM1 + 3, 128 * j))
        self.srd(sM2, P_DBG, size=256)
        l = self.lab("z")
        S("s_cmp_lg_u32 s2, 0"); S("s_cbranch_scc1 %s" % l)
        S("v_mul_u32_u24 v4, %d, v0" % CSTR)
        S.u("buffer_store_dword v%d, v4, s[%d:%d], 0 offen sc1" % (vZERO, sCNT, sCNT + 3))
        S("s_mov_b32 s36, %d" % (256 * CSTR))
        S.u("buffer_store_dword v%d, v4, s[%d:%d], s36 offen sc1" % (vZERO, sCNT, sCNT + 3))
        S("s_waitcnt vmcnt(0)"); S("s_barrier")
        S("s_mov_b64 exec, 1")
        S.u("buffer_store_dword v%d, v%d, s[%d:%d], 0 offen sc1" % (vONE, vZERO, sM2, sM2 + 3))
        S("s_mov_b64 exec, -1")
        S(l + ":")
        S("s_lshl_b32 s34, s2, 2"); S("s_add_u32 s46, s34, s%d" % sWV); S("s_lshl_b32 s34, s46, 11")
        self.srd(sACT, P_WO, off=34, size=2048)
        S("buffer_load_dwordx4 v[24:27], v%d, s[%d:%d], 0 offen" % (vL16, sACT, sACT + 3))
        S("buffer_load_dwordx4 v[28:31], v%d, s[%d:%d], 0 offen offset:1024" % (vL16, sACT, sACT + 3))
        self.code_prefetch()
        self.pretouch()
        if self.last >= 1:
            self.p1_wsetup()
            for i in range(self.o.get('p0_pre', 8)): self.p1_dma(i)
        S("s_lshl_b32 s34, s%d, 3" % sMB); S("s_lshr_b32 s35, s%d, 1" % sNB); S("s_add_u32 s34, s34, s35"); S("s_lshl_b32 s34, s34, 10")
        S("s_and_b32 s35, s%d, 1" % sNB); S("s_lshl_b32 s35, s35, 7"); S("s_add_u32 s34, s34, s35")
        S("s_lshl_b32 s35, s%d, 20" % sWV); S("s_add_u32 s34, s34, s35")
        self.srd(sST, P_WS, off=34, size=MB, const=WS_XN)
        S("v_lshrrev_b32 v4, 5, v%d" % vLANE); S("v_lshlrev_b32 v4, 17, v4")
        S("v_and_b32 v5, 3, v2"); S("v_lshl_add_u32 v4, v5, 8, v4"); S("v_lshl_add_u32 v4, v1, 4, v4")
        S("v_lshlrev_b32 v5, 4, v1"); S("s_lshl_b32 s35, s%d, 2" % sWV); S("v_add_u32 v6, s35, v5")
        S("s_mov_b32 s47, 0xffff0000")
        X = 32
        for i in range(16):
            S("v_lshlrev_b32 v%d, 16, v%d" % (X + 2 * i, 8 + i)); S("v_and_b32 v%d, s47, v%d" % (X + 2 * i + 1, 8 + i))
        def reduce_row(acc, ldsoff):
            S("v_add_f32 v%d, v%d, v%d" % (acc, acc, acc + 1))
            S("v_add_f32_dpp v%d, v%d, v%d row_ror:8 row_mask:0xf bank_mask:0xf" % (acc, acc, acc))
            self.xor16("v_add_f32", acc, acc + 1); self.xor32("v_add_f32", acc, acc + 1)
            S.lds_fill("ds_write_b32 v6, v%d offset:%d" % (acc, ldsoff), ldsoff, ldsoff + 128)
            S.wait_lg0(); S.barrier()
            S.lds_read("ds_read_b128 %s, v5 offset:%d" % (vr('v', acc), ldsoff), ldsoff, ldsoff + 128)
            S("v_add_f32 v%d, v%d, v%d" % (acc, acc, acc + 1)); S("v_add_f32 v%d, v%d, v%d" % (acc + 2, acc + 2, acc + 3))
            S("v_add_f32 v%d, v%d, v%d" % (acc, acc, acc + 2))
        S("v_pk_add_f32 v[64:65], v[32:33], v[34:35]"); S("v_pk_add_f32 v[66:67], v[36:37], v[38:39]")
        for i in range(4, 16):
            a_ = 64 + 2 * (i & 1); S("v_pk_add_f32 v[%d:%d], v[%d:%d], v[%d:%d]" % (a_, a_ + 1, a_, a_ + 1, X + 2 * i, X + 2 * i + 1))
        S("v_pk_add_f32 v[64:65], v[64:65], v[66:67]")
        reduce_row(64, U[0])
        S("v_mul_f32 v68, 0xba800000, v64")
        for i in range(16):
            S("v_pk_add_f32 v[%d:%d], v[%d:%d], v[68:69] op_sel_hi:[1,0]" % (X + 2 * i, X + 2 * i + 1, X + 2 * i, X + 2 * i + 1))
        S("v_pk_mul_f32 v[64:65], v[32:33], v[32:33]"); S("v_pk_mul_f32 v[66:67], v[34:35], v[34:35]")
        for i in range(2, 16):
            a_ = 64 + 2 * (i & 1); r = X + 2 * i
            S("v_pk_fma_f32 v[%d:%d], v[%d:%d], v[%d:%d], v[%d:%d]" % (a_, a_ + 1, r, r + 1, r, r + 1, a_, a_ + 1))
        S("v_pk_add_f32 v[64:65], v[64:65], v[66:67]")
        reduce_row(64, U[0] + 128)
        S("v_mov_b32 v70, 0x3727c5ac")
        S("v_fmac_f32 v70, 0x3a800000, v64")
        S("v_rsq_f32 v70, v70")
        zchk = S("buffer_load_dword v7, v%d, s[%d:%d], 0 offen sc1" % (vZERO, sM2, sM2 + 3))
        for j in range(4):
            for i in range(4 * j, 4 * j + 4):
                r = X + 2 * i
                S("v_pk_mul_f32 v[%d:%d], v[%d:%d], v[70:71] op_sel_hi:[1,0]" % (r, r + 1, r, r + 1))
            for i in range(4 * j, 4 * j + 4):
                S("v_cvt_pk_bf16_f32 v%d, v%d, v%d" % (8 + i, X + 2 * i, X + 2 * i + 1))
            S("s_mov_b32 s35, %d" % (j * 262144))
            last = S("buffer_store_dwordx4 %s, v4, s[%d:%d], s35 offen sc1" % (vr('v', 8 + 4 * j), sST, sST + 3))
        S("s_lshl_b32 s34, s45, 2")
        self.srd(sM1, P_WS, off=34, size=32, const=WS_XM)
        S("v_sub_f32 v69, 0, v68"); S("v_lshlrev_b32 v5, 2, v%d" % vLANE)
        S("s_lshl_b32 s35, s%d, 8" % sWV)
        last = S("buffer_store_dword v69, v5, s[%d:%d], s35 offen sc1" % (sM1, sM1 + 3))
        if self.last >= 1:
            for i in range(self.o.get('p0_pre', 8), self.o.get('p0_pre2', 16)): self.p1_dma(i)
        for i in range(8):
            S("v_lshlrev_b32 v%d, 16, v%d" % (X + 2 * i, 24 + i)); S("v_and_b32 v%d, s47, v%d" % (X + 2 * i + 1, 24 + i))
        for stp in (8, 4, 2):
            for i in range(0, stp, 2):
                S("v_pk_add_f32 v[%d:%d], v[%d:%d], v[%d:%d]" % (X + i, X + i + 1, X + i, X + i + 1, X + stp + i, X + stp + i + 1))
        S("v_add_f32 v32, v32, v33")
        for r in (8, 4, 2, 1):
            S("v_add_f32_dpp v32, v32, v32 row_ror:%d row_mask:0xf bank_mask:0xf" % r)
        self.xor16("v_add_f32", 32, 33); self.xor32("v_add_f32", 32, 33)
        S("v_mul_f32 v32, 0x3a800000, v32")
        S("v_cvt_pk_bf16_f32 v33, v32, v32"); S("v_and_b32 v34, s47, v33"); S("v_sub_f32 v32, v32, v34"); S("v_cvt_pk_bf16_f32 v32, v32, v32")
        S("v_cmp_eq_u32 vcc, 0, v%d" % vLANE); S("v_cndmask_b32 v32, v32, v33, vcc")
        S("s_lshr_b32 s34, s46, 5"); S("s_lshl_b32 s34, s34, 7")
        S("s_bfe_u32 s35, s46, 0x20002"); S("s_lshl_b32 s35, s35, 4"); S("s_add_u32 s34, s34, s35")
        S("s_bfe_u32 s35, s46, 0x10004"); S("s_lshl_b32 s35, s35, 3"); S("s_add_u32 s34, s34, s35")
        S("s_lshl_b32 s48, s%d, 1" % sWV)
        self.srd(sM1, P_WS, off=34, size=76, const=WS_WB)
        S("v_lshlrev_b32 v5, 6, v%d" % vLANE)
        S.wait(vm=last)
        l = self.lab("zc")
        S("v_cmp_eq_u32 vcc, 0, v7"); S("s_cbranch_vccz %s" % l)
        self.poll(None, 1, 7, srd=sM2, track=False)
        S(l + ":")
        S.barrier()
        S("s_mul_i32 s35, s%d, %d" % (sMB, CSTR))
        self.signal(35)
        self.wbar_st = S("buffer_store_short v32, v5, s[%d:%d], s48 offen sc1" % (sM1, sM1 + 3))
        self.stamp()
    def code_prefetch(self):
        if not self.o.get('prefetch', True): return
        S = self.S
        pc = self.lab("pc")
        S("s_getpc_b64 s[34:35]")
        S(pc + ":")
        S("s_lshr_b32 s36, s2, 3"); S("s_lshl_b32 s36, s36, 13")
        S("s_sub_u32 s%d, s34, %s-%s" % (sST, pc, self.name)); S("s_subb_u32 s%d, s35, 0" % (sST + 1))
        S("s_mov_b32 s%d, %s_end-%s" % (sST + 2, self.name, self.name)); S("s_mov_b32 s%d, 0x20000" % (sST + 3))
        S("v_lshlrev_b32 v7, 7, v%d" % vLANE)
        l = self.lab("pf")
        S("s_cmp_lg_u32 s%d, 3" % sWV); S("s_cbranch_scc1 %s" % l)
        S.u("buffer_load_dword v71, v7, s[%d:%d], s36 offen" % (sST, sST + 3))
        S(l + ":")

    def set_rd(self, vcur, base):
        for f in range(4): self.S("v_add_u32 v%d, %d, v%d" % (vcur + f, base, vRB + f))
    def trread(self, dst, vcur, f, rd, off, lo):
        return self.S.lds_read("ds_read_b64_tr_b16 %s, v%d offset:%d" % (dst, vcur + f, off + rd * 4096), lo, lo + 8192)

    def p1(self):
        S = self.S; o = self.o
        vCUR = 240; vW = 96; ACC = 0; ACCQ = 64; vPK = 128
        if self.first == 1:
            self.p1_wsetup()
            for i in range(o.get('p0_pre2', 16)): self.p1_dma(i)
        nd = o.get('p0_pre2', 16)
        S("s_lshl_b32 s34, s%d, 2" % sMB); S("s_add_u32 s34, s34, s%d" % sWV); S("s_lshl_b32 s34, s34, 11")
        self.srd(sACT, P_WS, off=34, size=4 * MB, const=WS_XN)
        S("s_mov_b32 s45, 0")
        S("s_lshl_b32 s34, s%d, 4" % sMB); S("s_add_u32 s49, s34, s%d" % sNB)
        S("s_lshl_b32 s34, s49, 2"); S("s_add_u32 s34, s34, s%d" % sWV); S("s_lshl_b32 s34, s34, 13")
        self.srd(sST, P_WS, off=34, size=8192, const=WS_KV)
        self.set_rd(vCUR, self.P1_SLOT[0])
        if self.sync_on(1):
            S("s_mul_i32 s35, s%d, %d" % (sMB, CSTR))
            self.poll(35, 16, 1)
        self.stamp()
        def act(n):
            if n >= 32: return
            for t in range(2):
                S("buffer_load_dwordx4 %s, v%d, s[%d:%d], s45 offen offset:%d sc1" % (vr('a', 8 * n + 4 * t), vL16, sACT, sACT + 3, 1024 * t))
            S("s_add_u32 s45, s45, 0x20000")
        LA = o.get('p1_la', 8)
        for n in range(LA): act(n)
        def unit(n):
            if n < 32:
                w = self.P1_SLOT[n >> 2]; return w, w + (n & 3) * 8192, [(f & 3, (f >> 2) * 1024) for f in range(8)], 2 * n + 1
            q = n - 32; st = q >> 2
            w = (U[0] if st < 4 else U[3]) + (st & 3) * 16384
            return w, w + ((q >> 1) & 1) * 8192, [(f, (q & 1) * 1024) for f in range(4)], 64 + (q | 1)
        rid = {}
        def rd(n, fi, r):
            if n >= 64: return
            w, ub, tl, _ = unit(n)
            f, ho = tl[fi]
            rid[(n, fi, r)] = self.trread(vr('v', vW + 4 * fi + 2 * r, 2), vCUR, f, r, ub - w + ho, ub)
        S.wait(vm=self.p1_dma_id[7]); S.barrier()
        for fi in range(8):
            rd(0, fi, 0); rd(0, fi, 1)
        side = []
        kvst = []
        for n in range(64):
            w, ub, tl, _ = unit(n)
            nt = len(tl); ntn = len(unit(n + 1)[2]) if n < 63 else 0
            newstage = (n & 3) == 3 and n < 63
            if n == 32:
                for h in range(2):
                    for t in range(2):
                        d = vPK + (4 * h + t) * 4; a0 = ACC + (4 * h + t) * 4; a1 = a0 + 8
                        for k, s_ in enumerate((a0, a0 + 2, a1, a1 + 2)):
                            side.append("v_cvt_pk_bf16_f32 v%d, v%d, v%d" % (d + k, s_, s_ + 1))
                        side.append(('st', 4 * h + t))
                    for dd in range(2):
                        d = vPK + (4 * h + 2 + dd) * 4; a0 = ACC + (4 + 2 * h + dd) * 8
                        for k in range(4):
                            side.append("v_cvt_pk_bf16_f32 v%d, v%d, v%d" % (d + k, a0 + 2 * k, a0 + 2 * k + 1))
                        side.append(('st', 4 * h + 2 + dd))
                side.append("s_mov_b32 s50, 4096")
                side.insert(0, side.pop())
            if n == 36:
                side.append("s_lshl_b32 s35, s%d, 13" % sWV); side.append("s_add_u32 s35, s35, %d" % U[2]); side.append("v_add_u32 v239, s35, v%d" % vL16)
                for i in range(8): side.append(('lw', i))
            reads = [(n + 1, fi, r) for fi in range(ntn) for r in range(2)]
            m = 0
            for fi in range(nt):
                for t in range(2):
                    kb = n if n < 32 else n - 32
                    x = vr('a', 8 * kb + 4 * t); wv = vr('v', vW + 4 * fi)
                    acc = (ACC if n < 32 else ACCQ) + (2 * fi + t) * 4
                    c = "0" if n in (0, 32) else vr('v', acc)
                    if t == 0 and fi % 2 == 0 and (n, min(fi + 1, nt - 1), 1) in rid: S.wait(lg=rid[(n, min(fi + 1, nt - 1), 1)])
                    if n < 32 and fi >= 4: S("%s %s, %s, %s, %s" % (MF, vr('v', acc), x, wv, c))
                    else: S("%s %s, %s, %s, %s" % (MF, vr('v', acc), wv, x, c))
                    if m == 1 and newstage:
                        self.set_rd(vCUR, unit(n + 1)[0])
                        need = self.p1_dma_id[unit(n + 4)[3]]
                        if n == 3 and hasattr(self, 'wbar_st'): need = max(need, self.wbar_st)
                        if n == o.get('p1_sig', 43): need = max(need, kvst[-1])
                        S.wait(vm=need); S.barrier()
                        if n == 3 and hasattr(self, 'wbar_st'):
                            S("s_mov_b32 s35, %d" % (CW * CSTR)); self.signal(35)
                        if n == o.get('p1_sig', 43):
                            S("s_add_u32 s35, s49, %d" % F1); S("s_mul_i32 s35, s35, %d" % CSTR); self.signal(35)
                    if m >= 1:
                        k = 1 if (n != 31) else 1
                        while reads and k > 0 and (reads[0][1] < fi or (reads[0][1] == fi and t == 1)):
                            rd(*reads.pop(0)); k -= 1
                    if n < 32:
                        if m == 3: act(n + LA)
                        if m in (7, 11): self.p1_dma(nd); nd += 1
                    else:
                        if 32 + 4 <= n and m in (2, 6) and nd < 96 and n >= 36: self.p1_dma(nd); nd += 1
                        for _ in range(2):
                            if side:
                                it = side.pop(0)
                                if isinstance(it, str): S(it)
                                elif it[0] == 'st':
                                    i = it[1]
                                    kvst.append(S("buffer_store_dwordx4 %s, v%d, s[%d:%d], %s offen offset:%d sc1" % (vr('v', vPK + 4 * i), vL16, sST, sST + 3, "s50" if i >= 4 else "0", (i & 3) * 1024)))
                                    break
                                elif it[0] == 'lw':
                                    i = it[1]
                                    S.lds_fill("ds_write_b128 v239, %s offset:%d" % (vr('v', vPK + 4 * i), i * 1024), U[2], U[3])
                                    break
                    m += 1
            while reads: rd(*reads.pop(0))
            if n == o.get('p1_poll', 53): self.p2_fetch()
        S("s_mov_b32 s34, 0x3e8293ee"); S("s_mov_b32 s35, s34")
        for h in range(2):
            for t in range(2):
                a0 = ACCQ + (4 * h + t) * 4; a1 = a0 + 8
                for s_ in (a0, a0 + 2, a1, a1 + 2):
                    S("v_pk_mul_f32 v[%d:%d], v[%d:%d], s[34:35]" % (s_, s_ + 1, s_, s_ + 1))
                for k, s_ in enumerate((a0, a0 + 2, a1, a1 + 2)):
                    S("v_cvt_pk_bf16_f32 v%d, v%d, v%d" % (144 + (2 * h + t) * 4 + k, s_, s_ + 1))
        self.stamp()
    def p2_fetch(self):
        S = self.S
        S("s_sub_u32 s36, s49, 32"); S("s_cselect_b32 s37, 0, 1")
        S("s_sub_u32 s38, s49, 16"); S("s_cselect_b32 s39, 0, 1")
        S("s_max_i32 s34, s36, 0"); S("s_max_i32 s35, s38, 0")
        S("s_add_u32 s34, s34, %d" % F1); S("s_mul_i32 s34, s34, %d" % CSTR)
        S("s_add_u32 s35, s35, %d" % F1); S("s_mul_i32 s35, s35, %d" % CSTR)
        S("v_cmp_eq_u32 vcc, 0, v%d" % vLANE)
        S("v_mov_b32 v236, s35"); S("v_mov_b32 v237, s34"); S("v_cndmask_b32 v236, v236, v237, vcc")
        S("v_mov_b32 v238, s39"); S("v_mov_b32 v237, s37"); S("v_cndmask_b32 v238, v238, v237, vcc")
        self.poll(None, 0, 237, vaddr=236, mask=3, vexp=238)
        self.srd(sM1, P_WS, size=8 * MB, const=WS_KV)
        S("s_lshl_b32 s51, s%d, 13" % sWV)
        self.kv_dma = None
        for nbr, (si, sv) in enumerate(((36, 37), (38, 39))):
            S("s_lshl_b32 s34, s%d, 15" % si); S("s_add_u32 s34, s34, s51")
            S("s_cmp_lg_u32 s%d, 0" % sv); S("s_cselect_b32 s34, s34, 0x1000000")
            for i in range(8):
                if i % 4 == 0:
                    S("s_add_u32 m0, s51, %d" % (nbr * 32768 + i * 1024))
                    if i: S("s_add_u32 s34, s34, 4096")
                    else: S("s_nop 0")
                self.kv_dma = S.lds_fill("buffer_load_dwordx4 v%d, s[%d:%d], s34 offen offset:%d sc1 lds" % (vL16, sM1, sM1 + 3, (i & 3) * 1024),
                                         nbr * 32768, nbr * 32768 + 32768)

    def p3_kb(self, i): return 2 * i if i < 16 else 2 * (i - 16) + 1
    def p3_unit(self, i):
        d = i >> 1
        return (U[3] + d * 8192) if d < 8 else (8192 + (d - 8) * 8192)
    def p3_wsetup(self):
        S = self.S
        self.wdma_off(self.vWD, 2048, False, 232, 233)
        S("s_lshl_b32 s35, s%d, 7" % sNB); S("s_sub_u32 s36, %d, s35" % (1024 * 2048))
        self.srd(sW, P_WO, off=35, size="s36")
        S("s_lshl_b32 s40, s%d, 11" % sWV)
        self.p3_dma_id = {}
    def p3_dma(self, i):
        S = self.S
        base = self.p3_unit(i); h = i & 1
        if h == 0: S("s_add_u32 m0, s40, %d" % base)
        S("s_mov_b32 s41, %d" % (self.p3_kb(i) * 65536 - 1024 * h))
        self.p3_dma_id[i] = S.lds_fill("buffer_load_dwordx4 v%d, s[%d:%d], s41 offen offset:%d lds" % (self.vWD, sW, sW + 3, 1024 * h), base, base + 8192)
    def p3_areg(self, i):
        if i < 16: return 72 + 8 * i
        if i < 25: return 8 * (i - 16)
        if i < 27: return 200 + 8 * (i - 25)
        return 72 + 8 * (i - 27)
    def p3_act(self, i):
        S = self.S
        S("s_mov_b32 s45, 0x%x" % (self.p3_kb(i) * 0x20000))
        for t in range(2):
            S("buffer_load_dwordx4 %s, v%d, s[%d:%d], s45 offen offset:%d sc1" % (vr('a', self.p3_areg(i) + 4 * t), vL16, sACT, sACT + 3, 1024 * t))
    def p3_pre(self):
        S = self.S; side = []
        self.p3_wsetup()
        S("s_lshl_b32 s34, s%d, 2" % sMB); S("s_add_u32 s34, s34, s%d" % sWV); S("s_lshl_b32 s52, s34, 11")
        S("s_mov_b32 s34, s52")
        self.srd(sACT, P_WS, off=34, size=4 * MB, const=WS_O)
        S("s_lshl_b32 s34, s52, 5"); S("s_lshl_b32 s35, s%d, 7" % sNB); S("s_add_u32 s53, s34, s35")
        S("s_mov_b32 s34, s53")
        self.srd(sM1, P_X, off=34, size=65536 - 1920)
        S("v_and_b32 v232, 15, v%d" % vLANE); S("v_lshlrev_b32 v246, 11, v232")
        S("v_bfe_u32 v233, v%d, 4, 1" % vLANE); S("v_lshl_add_u32 v246, v233, 5, v246")
        S("v_lshrrev_b32 v233, 5, v%d" % vLANE); S("v_lshl_add_u32 v246, v233, 4, v246")
        S("s_mov_b32 s54, 32768")
        for t in range(2):
            for p in range(2):
                side.append("buffer_load_dwordx4 %s, v246, s[%d:%d], %s offen offset:%d" % (vr('a', 216 + 8 * t + 4 * p), sM1, sM1 + 3, "s54" if t else "0", 64 * p))
        S("s_lshr_b32 s34, s52, 4")
        self.srd(sM2, P_WS, off=34, size=128, const=WS_XM)
        S("v_lshlrev_b32 v245, 2, v232")
        for t in range(2):
            side.append("buffer_load_dword a%d, v245, s[%d:%d], 0 offen offset:%d sc1" % (232 + t, sM2, sM2 + 3, 64 * t))
        for i in range(16): side.append(('wdma', i))
        return side
    def p3_table(self):
        S = self.S
        if self.first == 0:
            S("s_mov_b32 s35, %d" % (CW * CSTR)); S("v_mov_b32 v233, 0x100")
            self.poll(35, 0, 232, vexp=233)
        self.srd(sM2, P_WS, size=4096, const=WS_WB)
        S("s_lshl_b32 s35, s%d, 10" % sWV); S("s_mov_b32 m0, s35")
        self.tab_id = S.lds_fill("buffer_load_dwordx4 v%d, s[%d:%d], s35 offen sc1 lds" % (vL16, sM2, sM2 + 3), 0, 4096)

    def p2(self):
        S = self.S; o = self.o
        vQ = 144; vM = 160; vTD = 192; vTO = 196; vOA = 200; vONES = 212; vMX = 216; vKA = 224
        KA, VA, KBr = 0, 72, 144
        S("v_and_b32 v232, 15, v%d" % vLANE); S("v_lshrrev_b32 v233, 4, v%d" % vLANE); S("v_lshlrev_b32 v233, 2, v233")
        S("v_sub_u32 v232, v232, v233")
        S("s_lshl_b32 s34, s%d, 2" % sMB); S("s_add_u32 s34, s34, s%d" % sWV)
        S("v_mov_b32 v233, 0x%x" % NEG)
        for b in range(8):
            S("s_cmp_ge_u32 s34, %d" % (8 - b)); S("s_cselect_b32 s35, 0, 0x%x" % NEG)
            for r in range(4): S("v_mov_b32 v%d, s35" % (vM + 4 * b + r))
        for r in range(4):
            S("v_cmp_le_i32 vcc, %d, v232" % r)
            S("v_cndmask_b32 v%d, v233, v%d, vcc" % (vTD + r, vZERO))
            S("v_cndmask_b32 v%d, v%d, v233, vcc" % (vTO + r, vM))
            S("v_mov_b32 v%d, 0x3f803f80" % (vONES + r))
        S("s_lshl_b32 s35, s%d, 13" % sWV); S("v_add_u32 v%d, s35, v%d" % (vKA, vL16)); S("v_add_u32 v%d, 0x8000, v%d" % (vKA + 1, vKA))
        S("s_lshl_b32 s34, s34, 1"); S("s_lshl_b32 s35, s%d, 8" % sNB); S("s_add_u32 s34, s34, s35"); S("s_lshl_b32 s34, s34, 10")
        self.srd(sST, P_WS, off=34, size=0x21000, const=WS_O)
        S("s_mov_b32 s55, 0x20000")
        S.wait(vm=self.kv_dma, lg=S.lg - 1); S.barrier()
        self.stamp()
        def kvread(dst, b, h, j):
            hi = b >= 4
            off = (b - 4 * hi) * 8192 + h * 4096 + j * 1024
            S.lds_read("ds_read_b128 %s, v%d offset:%d" % (vr('a', dst), vKA + hi, off), 0, U[3])
        kreg = lambda h, b, kt: (KA if h == 0 else KBr) + 8 * b + 4 * kt
        vreg = lambda h, b, d: (VA if h == 0 else KA) + 8 * b + 4 * d
        def tiles(qt): return [(b, kt) for b in range(9) for kt in range(2) if not (b == 0 and qt == 1 and kt == 0) and not (b == 8 and qt == 0 and kt == 1)]
        def s_mfmas(u):
            h, qt = divmod(u, 2); out = []
            for b, kt in tiles(qt):
                d = (u & 1) * 72 + 8 * b + 4 * kt
                if b == 8: c = vr('v', vTD) if kt == qt else "0"
                elif b == 0 and kt == qt: c = vr('v', vTO)
                else: c = vr('v', vM + 4 * b)
                out.append("%s %s, %s, %s, %s" % (MF, vr('v', d), vr('a', kreg(h, b, kt)), vr('v', vQ + 4 * u), c))
            return out
        def pv_mfmas(u):
            h, qt = divmod(u, 2); out = []
            for b in range(9):
                p = vr('v', (u & 1) * 72 + 8 * b)
                for d in range(3):
                    acc = vr('v', vOA + 4 * d)
                    out.append("%s %s, %s, %s, %s" % (MF, acc, vr('a', vreg(h, b, d)) if d < 2 else vr('v', vONES), p, "0" if b == 0 else acc))
            return out
        def softmax(u):
            h, qt = divmod(u, 2); B = (u & 1) * 72; out = []
            L = [B + 8 * b + 4 * kt + r for b, kt in tiles(qt) for r in range(4)]
            m0, m1 = vMX, vMX + 1
            out.append("v_max3_f32 v%d, v%d, v%d, v%d" % (m0, L[0], L[1], L[2])); out.append("v_max3_f32 v%d, v%d, v%d, v%d" % (m1, L[3], L[4], L[5]))
            for i in range(31):
                m = m0 if i % 2 == 0 else m1
                out.append("v_max3_f32 v%d, v%d, v%d, v%d" % (m, m, L[6 + 2 * i], L[7 + 2 * i]))
            out.append("v_max_f32 v%d, v%d, v%d" % (m0, m0, m1))
            for sw in ("16", "32"):
                out += ["v_mov_b32 v%d, v%d" % (m1, m0), "v_permlane%s_swap_b32 v%d, v%d" % (sw, m0, m1), "v_max_f32 v%d, v%d, v%d" % (m0, m0, m1)]
            pend = []
            for b in range(9):
                g = B + 8 * b
                kts = [kt for bb, kt in tiles(qt) if bb == b]
                sub = []; ex = []; cv = []
                for kt in kts:
                    for r in (0, 2):
                        x = g + 4 * kt + r
                        if o.get('p2_pk', True):
                            sub.append("v_pk_add_f32 v[%d:%d], v[%d:%d], v[%d:%d] op_sel_hi:[1,0] neg_lo:[0,1] neg_hi:[0,1]" % (x, x + 1, x, x + 1, m0, m0 + 1))
                        else:
                            sub += ["v_sub_f32 v%d, v%d, v%d" % (x, x, m0), "v_sub_f32 v%d, v%d, v%d" % (x + 1, x + 1, m0)]
                        ex += ["v_exp_f32 v%d, v%d" % (x, x), "v_exp_f32 v%d, v%d" % (x + 1, x + 1)]
                for kt in range(2):
                    for r in range(2):
                        if kt in kts: cv.append("v_cvt_pk_bf16_f32 v%d, v%d, v%d" % (g + 2 * kt + r, g + 4 * kt + 2 * r, g + 4 * kt + 2 * r + 1))
                        else: cv.append("v_mov_b32 v%d, 0" % (g + 2 * kt + r))
                out += sub + pend + ex
                pend = cv
            return out + pend
        ost = {}
        def o_epi(u):
            h, qt = divmod(u, 2); t = vMX + 2
            out = ["v_rcp_f32 v%d, v%d" % (t, vOA + 8)]
            for r in range(0, 8, 2):
                out.append("v_pk_mul_f32 v[%d:%d], v[%d:%d], v[%d:%d] op_sel_hi:[1,0]" % (vOA + r, vOA + r + 1, vOA + r, vOA + r + 1, t, t + 1))
            for r in range(4):
                out.append("v_cvt_pk_bf16_f32 v%d, v%d, v%d" % (t + 2 + r, vOA + 2 * r, vOA + 2 * r + 1))
            out.append(('ost', u, "buffer_store_dwordx4 %s, v%d, s[%d:%d], %s offen offset:%d sc1" % (vr('v', t + 2), vL16, sST, sST + 3, "s55" if h else "0", 1024 * qt)))
            return out
        def put(it):
            if isinstance(it, str): S(it)
            elif it[0] == 'ost': ost[it[1]] = S(it[2])
            elif it[0] == 'kv': kvread(*it[1:])
            elif it[0] == 'wdma': self.p3_dma(it[1])
            elif it[0] == 'call': it[1]()
        def weave(valu, mf, side, epi_after=None, epi=None, span=0.8):
            nv = len(valu); nm = len(mf); ns = len(side); im = 0; is_ = 0; epi = list(epi or []); hold = None
            for i, x in enumerate(valu):
                put(x)
                while im < nm and im < (i + 1) * nm / (span * nv):
                    put(mf[im]); im += 1
                    if epi_after is not None and im == epi_after: hold = i + 9
                while is_ < ns and is_ < (i + 1) * ns / (span * nv):
                    put(side[is_]); is_ += 1
                if hold is not None and i >= hold and epi: put(epi.pop(0))
            for x in mf[im:] + side[is_:] + epi: put(x)
        for b in range(9):
            for kt in range(2): kvread(kreg(0, b, kt), b, 0, kt)
        vr0 = [('kv', vreg(0, b, d), b, 0, 2 + d) for b in range(9) for d in range(2)]
        kr1 = [('kv', kreg(1, b, kt), b, 1, kt) for b in range(9) for kt in range(2)]
        vr1 = [('kv', vreg(1, b, d), b, 1, 2 + d) for b in range(9) for d in range(2)]
        p3side = self.p3_pre() if self.last >= 3 else []
        for i, x in enumerate(s_mfmas(0)):
            S(x); put(vr0[i])
        put(vr0[17])
        weave(softmax(0), s_mfmas(1), kr1 + p3side)
        weave(softmax(1), pv_mfmas(0) + s_mfmas(2), vr1, 27, o_epi(0))
        weave(softmax(2), pv_mfmas(1) + s_mfmas(3), [], 27, o_epi(1))
        def mid():
            S.wait(vm=ost[1], lg=S.lg - 1); S.barrier()
            S("s_lshl_b32 s35, s%d, 1" % sMB); S("s_add_u32 s35, s35, %d" % C2); S("s_mul_i32 s56, s35, %d" % CSTR)
            self.signal(56)
            if self.last >= 3: self.p3_table()
        sm3 = softmax(3)
        k = int(len(sm3) * o.get('p2_mid', 0.4))
        sm3.insert(k, ('call', mid))
        if self.last >= 3:
            for i in range(16): sm3.insert(k + 4 + 5 * i, ('wdma', 16 + i))
        weave(sm3, pv_mfmas(2), [], 27, o_epi(2), span=0.5)
        if self.last >= 3:
            self.poll(56, 16, 232)
            for i in range(o.get('p3_pre', 8)): self.p3_act(i)
        for x in pv_mfmas(3) + o_epi(3): put(x)
        self.o_last = ost[3]
        self.stamp()

    def p3(self):
        S = self.S; o = self.o
        vCUR = 240; vW = 96; vBAR = 112; MU = 32; vTA = 244
        na = o.get('p3_pre', 8)
        if self.first == 3:
            self.vWD = 247
            for it in self.p3_pre():
                if isinstance(it, str): S(it)
                else: self.p3_dma(it[1])
            self.p3_table()
            for i in range(16, 32): self.p3_dma(i)
            for i in range(na): self.p3_act(i)
        S("v_and_b32 v%d, 1, v%d" % (vTA, vLANE)); S("v_lshlrev_b32 v%d, 6, v%d" % (vTA, vTA))
        S("v_lshrrev_b32 v232, 4, v%d" % vLANE); S("v_lshl_add_u32 v%d, v232, 4, v%d" % (vTA, vTA))
        self.set_rd(vCUR, U[3])
        S.wait(vm=max(self.p3_dma_id[31], self.tab_id)); S.barrier()
        rid = {}
        def win(i): return U[3] if i < 16 else 8192
        def rd(i, f, r):
            if f < 4: rid[(i, f, r)] = self.trread(vr('v', vW + 4 * f + 2 * r, 2), vCUR, f, r, self.p3_unit(i) - win(i) + (i & 1) * 1024, self.p3_unit(i))
            else: rid[(i, f, r)] = S.lds_read("ds_read_b128 %s, v%d offset:%d" % (vr('v', vBAR), vTA, self.p3_kb(i) * 128), 0, 4096)
        order = lambda i: [(i, f, r) for f in range(4) for r in range(2)] + [(i, 4, 1)]
        for x in order(0): rd(*x)
        p4side = []
        for i in range(32):
            reads = order(i + 1) if i < 31 else []
            if i == o.get('p3_sig', 5) and self.sync_on(3):
                S.wait(vm=self.o_last); S.barrier()
                S("s_add_u32 s56, s56, %d" % CSTR); self.signal(56)
            if i == o.get('p3_poll', 12):
                if self.sync_on(3): self.poll(56, 16, 232)
                for k in range(16, 27): self.p3_act(k)
            if i == 20 and self.last >= 4:
                S.wait(lg=rid[(i, 4, 1)]); S.barrier()
                self.p4_setup()
                p4side = [(0, j) for j in range(7)] + [(1, j) for j in range(7)]
            m = 0
            for f in range(5):
                for t in range(2):
                    if t == 0 and f in (0, 2): S.wait(lg=rid[(i, f + 1, 1)])
                    acc = (2 * f + t) * 4 if f < 4 else MU + 4 * t
                    wv = vW + 4 * f if f < 4 else vBAR
                    S("%s %s, %s, %s, %s" % (MF, vr('v', acc), vr('v', wv), vr('a', self.p3_areg(i) + 4 * t), "0" if i == 0 else vr('v', acc)))
                    if m == 1 and i == 15: self.set_rd(vCUR, 8192)
                    if reads and m >= 1 and (reads[0][1] < f or (reads[0][1] == f and t == 1)): rd(*reads.pop(0))
                    if m == 2 and na < 16: self.p3_act(na); na += 1
                    if m == 6 and na < 16 and i < 4: self.p3_act(na); na += 1
                    if m == 2 and 13 <= i < 18: self.p3_act(27 + i - 13)
                    if m in (4, 8) and p4side: self.p4_dma(*p4side.pop(0))
                    m += 1
            while reads: rd(*reads.pop(0))
        self.stamp()
        XR = 40; XF = 64; HC = 96
        S("s_lshl_b32 s35, s%d, 18" % sNB); S("s_add_u32 s34, s52, s35")
        self.srd(sST, P_WS, off=34, size=0x21000, const=WS_HC)
        S("s_lshl_b32 s35, s%d, 2" % sNB); S("s_add_u32 s34, s52, s35")
        self.srd(sM2, P_WS, off=34, size=2048 - 60, const=WS_VAR)
        S("s_mov_b32 s47, 0xffff0000"); S("s_mov_b32 s55, 0x20000")
        for k in range(16): S("v_accvgpr_read_b32 v%d, a%d" % (XR + k, 216 + k))
        for t in range(2): S("v_accvgpr_read_b32 v%d, a%d" % (56 + 2 * t, 232 + t))
        for q in range(4):
            S("v_permlane16_swap_b32 v%d, v%d" % (XR + 4 * q, XR + 4 * q + 2)); S("v_permlane16_swap_b32 v%d, v%d" % (XR + 4 * q + 1, XR + 4 * q + 3))
        for t in range(2):
            S("v_add_f32 v%d, v%d, v%d" % (56 + 2 * t, 56 + 2 * t, MU + 4 * t)); S("v_add_f32 v%d, v%d, v%d" % (56 + 2 * t, 56 + 2 * t, MU + 4 * t + 1))
        last = None
        for t in range(2):
            mu = 56 + 2 * t; sq = 60 + 2 * t
            for p in range(2):
                for k in range(4):
                    f = 2 * p + (k >> 1); acc = (2 * f + t) * 4 + 2 * (k & 1); xr = XR + 8 * t + 4 * p + k; xf = XF + 2 * k
                    S("v_lshlrev_b32 v%d, 16, v%d" % (xf, xr)); S("v_and_b32 v%d, s47, v%d" % (xf + 1, xr))
                    S("v_pk_add_f32 v[%d:%d], v[%d:%d], v[%d:%d]" % (acc, acc + 1, acc, acc + 1, xf, xf + 1))
                    S("v_pk_add_f32 v[%d:%d], v[%d:%d], v[%d:%d] op_sel_hi:[1,0] neg_lo:[0,1] neg_hi:[0,1]" % (xf, xf + 1, acc, acc + 1, mu, mu + 1))
                    S("v_cvt_pk_bf16_f32 v%d, v%d, v%d" % (HC + 8 * t + 4 * p + k, xf, xf + 1))
                    if p == 0 and k == 0: S("v_pk_mul_f32 v[%d:%d], v[%d:%d], v[%d:%d]" % (sq, sq + 1, xf, xf + 1, xf, xf + 1))
                    else: S("v_pk_fma_f32 v[%d:%d], v[%d:%d], v[%d:%d], v[%d:%d]" % (sq, sq + 1, xf, xf + 1, xf, xf + 1, sq, sq + 1))
                S("buffer_store_dwordx4 %s, v%d, s[%d:%d], %s offen offset:%d sc1" % (vr('v', HC + 8 * t + 4 * p), vL16, sST, sST + 3, "s55" if p else "0", 1024 * t))
            S("v_add_f32 v%d, v%d, v%d" % (sq, sq, sq + 1))
            self.xor16("v_add_f32", sq, sq + 1); self.xor32("v_add_f32", sq, sq + 1)
        S("v_cmp_gt_u32 vcc, 16, v%d" % vLANE); S("v_lshlrev_b32 v61, 6, v%d" % vLANE); S("v_cndmask_b32 v60, v62, v60, vcc")
        last = S("buffer_store_dword v60, v61, s[%d:%d], 0 offen sc1" % (sM2, sM2 + 3))
        for k in range(32): S("v_accvgpr_write_b32 a%d, v%d" % (224 + k, k))
        S.wait(vm=last, lg=S.lg - 1); S.barrier()
        S("s_add_u32 s35, s%d, %d" % (sMB, C3)); S("s_mul_i32 s35, s35, %d" % CSTR)
        self.signal(35)

    P4_STG = 28672
    def p4_setup(self):
        S = self.S; o = self.o
        self.p4_nst = NST = o.get('p4_nst', 5); self.p4_off = 160 * KB - NST * self.P4_STG; self.p4_k0 = NST - 2
        VW = 224
        S("s_mov_b32 s34, 0x%x" % ((2**32 + 13) // 14)); S("s_mov_b32 s35, 7168")
        for j in range(7):
            S("v_add_u32 v236, %d, v%d" % (64 * j, vLANE)); S("v_mul_hi_u32 v237, v236, s34")
            S("v_mul_u32_u24 v238, 14, v237"); S("v_sub_u32 v238, v236, v238"); S("v_lshlrev_b32 v238, 4, v238")
            S("v_mad_u32_u24 v%d, v237, s35, v238" % (VW + j))
            if j & 3: S("v_subrev_u32 v%d, %d, v%d" % (VW + j, (j & 3) * 1024, VW + j))
        S("s_cmp_ge_u32 s%d, 2" % sWV)
        S("s_cselect_b32 s36, s%d, s%d" % (P_WU, P_WG)); S("s_cselect_b32 s37, s%d, s%d" % (P_WU + 1, P_WG + 1))
        S("s_and_b32 s34, s%d, 1" % sWV); S("s_mul_i32 s34, s34, %d" % (32 * 7168)); S("s_mul_i32 s35, s%d, 224" % sNB4); S("s_add_u32 s34, s34, s35")
        S("s_sub_u32 s35, %d, s34" % (1024 * 7168))
        self.srd(sW, 36, off=34, size="s35")
        S("s_mul_i32 s41, s%d, 7168" % sWV)
        S("s_add_u32 s42, s41, %d" % (self.p4_off + NST * self.P4_STG))
        S("s_add_u32 s41, s41, %d" % (self.p4_off + self.p4_k0 * self.P4_STG))
        S("s_mov_b32 s43, 0")
        self.p4_id = {}
    def p4_slot(self, st): return self.p4_off + ((st + self.p4_k0) % self.p4_nst) * self.P4_STG
    def p4_dma(self, st, j):
        S = self.S
        if st >= 16: return
        if j == 0: S("s_mov_b32 m0, s41"); S("s_add_u32 s41, s41, %d" % self.P4_STG)
        if j == 4: S("s_add_u32 m0, m0, 4096"); S("s_cmp_ge_u32 s41, s42")
        b = self.p4_slot(st)
        self.p4_id[(st, j)] = S.lds_fill("buffer_load_dwordx4 v%d, s[%d:%d], s43 offen offset:%d lds" % (224 + j, sW, sW + 3, (j & 3) * 1024), b, b + self.P4_STG)
        if j == 4: S("s_cselect_b32 s44, %d, 0" % (self.p4_nst * self.P4_STG)); S("s_sub_u32 s41, s41, s44")
        if j == 6: S("s_add_u32 s43, s43, %d" % (64 * 7168))
    def p4(self):
        S = self.S; o = self.o
        AW, AX, AV = 0, 56, 120; VLB, VLA = 231, 232; NST = None
        if self.first == 4:
            self.p4_setup()
            for st in range(2):
                for j in range(7): self.p4_dma(st, j)
        NST = self.p4_nst
        pre = [(st, j) for st in range(2, NST - 2) for j in range(7)] + [(NST - 2, j) for j in range(4)]
        for x in pre: self.p4_dma(*x)
        S("v_lshrrev_b32 v233, 2, v%d" % vLANE); S("v_mul_u32_u24 v233, 224, v233")
        S("v_and_b32 v234, 3, v%d" % vLANE); S("v_lshl_add_u32 v%d, v234, 3, v233" % VLB)
        S("s_mov_b32 s46, %d" % self.p4_slot(0)); S("v_add_u32 v%d, s46, v%d" % (VLA, VLB))
        S("s_lshl_b32 s34, s%d, 2" % sMB4); S("s_add_u32 s34, s34, s%d" % sWV); S("s_lshl_b32 s57, s34, 12")
        S("s_mov_b32 s34, s57"); self.srd(sACT, P_WS, off=34, size=4 * MB, const=WS_HC)
        S("s_mov_b32 s34, s57"); self.srd(sM2, P_WS, off=34, size=4096, const=WS_VAR)
        S("v_and_b32 v233, 15, v%d" % vLANE); S("v_lshlrev_b32 v233, 6, v233"); S("v_lshrrev_b32 v234, 4, v%d" % vLANE); S("v_lshl_add_u32 v233, v234, 4, v233")
        S("s_mov_b32 s45, 0")
        if self.sync_on(4):
            S("s_lshl_b32 s35, s%d, 1" % sMB4); S("s_lshr_b32 s34, s%d, 1" % sWV); S("s_add_u32 s35, s35, s34")
            S("s_add_u32 s35, s35, %d" % C3); S("s_mul_i32 s35, s35, %d" % CSTR)
            self.poll(35, 16, 234)
        self.stamp()
        def act(n, t):
            if n >= 32: return
            S("buffer_load_dwordx4 %s, v%d, s[%d:%d], s45 offen offset:%d sc1" % (vr('a', AX + 16 * (n & 3) + 4 * t), vL16, sACT, sACT + 3, 1024 * t))
            if t == 3: S("s_add_u32 s45, s45, 0x20000")
        for n in range(3):
            for t in range(4): act(n, t)
        for t in range(4):
            S("buffer_load_dwordx4 %s, v233, s[%d:%d], 0 offen offset:%d sc1" % (vr('a', AV + 4 * t), sM2, sM2 + 3, 1024 * t))
        rid = {}
        def rd(n, fi, r):
            f, mat = divmod(fi, 2)
            off = mat * 14336 + (32 * (n & 1) + 16 * r) * 224 + 32 * f; b = self.p4_slot(n >> 1)
            rid[(n, fi, r)] = S.lds_read("ds_read_b64_tr_b16 %s, v%d offset:%d" % (vr('a', AW + 4 * fi + 2 * r, 2), VLA, off), b, b + self.P4_STG)
        S.wait(vm=self.p4_id[(0, 6)]); S.barrier()
        for fi in range(14):
            rd(0, fi, 0)
            if fi < 13: rd(0, fi, 1)
        p5side = []
        for n in range(32):
            st, ks = divmod(n, 2)
            if n % 4 == 0: S.newblock()
            for m in range(56):
                fi, t = divmod(m, 4)
                if t == 0 and fi in (0, 4, 8, 12): S.wait(lg=rid[(n, min(fi + 3, 13), 1)])
                acc = m * 4
                S("%s %s, %s, %s, %s" % (MF, vr('v', acc), vr('a', AW + 4 * fi), vr('a', AX + 16 * (n & 3) + 4 * t), "0" if n == 0 else vr('v', acc)))
                if m == 1: rd(n, 13, 1)
                if ks == 1 and st < 15:
                    if m == 0:
                        S("s_add_u32 s46, s46, %d" % self.P4_STG); S("s_cmp_ge_u32 s46, %d" % (160 * KB)); S("s_cselect_b32 s46, %d, s46" % self.p4_off)
                    if m == 2:
                        S("v_add_u32 v%d, s46, v%d" % (VLA, VLB)); S.wait(vm=self.p4_id[(st + 1, 6)]); S.barrier()
                if n < 31:
                    if t == 3: rd(n + 1, fi, 0)
                    if t == 1 and fi >= 1: rd(n + 1, fi - 1, 1)
                if m in (6, 14, 22, 30): act(n + 3, (m - 6) // 8)
                if m in (10, 26, 38, 50):
                    k = (10, 26, 38, 50).index(m)
                    if ks == 1: self.p4_dma(st - 1 + NST, k)
                    elif k < 3: self.p4_dma(st - 2 + NST, 4 + k)
                if self.last >= 5:
                    if n == 29 and m == 4: self.p5_setup(); p5side = list(range(o.get('p5_pre', 16)))
                    if p5side and m % 8 == 4: self.p5_dma(p5side.pop(0))
        S.newblock()
        self.stamp()
        R = 224; T = 232
        S("s_and_b32 s34, s%d, 1" % sNB4)
        S("s_lshr_b32 s35, s%d, 1" % sNB4); S("s_mul_i32 s35, s35, %d" % (7 * 0x20000)); S("s_add_u32 s35, s35, s57")
        self.srd(sST, P_WS, off=35, size=7 * 0x20000, const=WS_HH)
        for t in range(4):
            for k in range(4): S("v_accvgpr_read_b32 v%d, a%d" % (T + k, AV + 4 * t + k))
            S("v_pk_add_f32 v[%d:%d], v[%d:%d], v[%d:%d]" % (T, T + 1, T, T + 1, T + 2, T + 3)); S("v_add_f32 v%d, v%d, v%d" % (T, T, T + 1))
            self.xor16("v_add_f32", T, T + 1); self.xor32("v_add_f32", T, T + 1)
            S("v_mov_b32 v%d, 0x3727c5ac" % (T + 1)); S("v_fmac_f32 v%d, 0x3a800000, v%d" % (T + 1, T))
            S("v_rsq_f32 v%d, v%d" % (R + 2 * t, T + 1)); S("v_mul_f32 v%d, 0xbfb8aa3b, v%d" % (R + 2 * t + 1, R + 2 * t))
        S("s_mov_b32 s36, 1.0"); S("s_mov_b32 s37, 1.0")
        S("v_bfe_u32 v233, v%d, 4, 1" % vLANE); S("v_lshlrev_b32 v233, 10, v233"); S("v_lshrrev_b32 v234, 5, v%d" % vLANE); S("v_lshl_add_u32 v233, v234, 8, v233")
        S("v_and_b32 v234, 15, v%d" % vLANE); S("v_lshl_add_u32 v233, v234, 4, v233"); S("s_lshl_b32 s35, s34, 9"); S("v_add_u32 v233, s35, v233")
        def glu(f, t, d0):
            g = (8 * f + t) * 4; u = g + 16; r = R + 2 * t
            for k in (0, 2): S("v_pk_mul_f32 v[%d:%d], v[%d:%d], v[%d:%d] op_sel:[0,1] op_sel_hi:[1,1]" % (g + k, g + k + 1, g + k, g + k + 1, r, r + 1))
            for k in range(4): S("v_exp_f32 v%d, v%d" % (g + k, g + k))
            for k in (0, 2): S("v_pk_mul_f32 v[%d:%d], v[%d:%d], v[%d:%d] op_sel_hi:[1,0]" % (u + k, u + k + 1, u + k, u + k + 1, r, r + 1))
            for k in (0, 2): S("v_pk_add_f32 v[%d:%d], v[%d:%d], s[36:37]" % (g + k, g + k + 1, g + k, g + k + 1))
            for k in range(4): S("v_rcp_f32 v%d, v%d" % (g + k, g + k))
            for k in (0, 2): S("v_pk_mul_f32 v[%d:%d], v[%d:%d], v[%d:%d]" % (u + k, u + k + 1, u + k, u + k + 1, g + k, g + k + 1))
            for k in range(2): S("v_cvt_pk_bf16_f32 v%d, v%d, v%d" % (d0 + k, u + 2 * k, u + 2 * k + 1))
        def variant(par):
            last = None
            pairs = [(0, 1, 0), (2, 3, 1), (4, 5, 2)] if par == 0 else [(1, 2, 4), (3, 4, 5), (5, 6, 6)]
            q = 0
            for fa, fb, blk in pairs:
                S("s_mov_b32 s35, 0x%x" % (blk * 0x20000))
                for t in range(4):
                    d = 236 + 4 * (q & 1); q += 1
                    glu(fa, t, d); glu(fb, t, d + 2)
                    last = S("buffer_store_dwordx4 %s, v%d, s[%d:%d], s35 offen offset:%d sc1" % (vr('v', d), vL16, sST, sST + 3, 1024 * t))
            fs = 6 if par == 0 else 0
            S("s_mov_b32 s35, 0x%x" % (3 * 0x20000))
            for tp in range(2):
                d = 236 + 4 * (q & 1); q += 1
                glu(fs, 2 * tp, d); glu(fs, 2 * tp + 1, d + 2)
                S("v_permlane16_swap_b32 v%d, v%d" % (d, d + 2)); S("v_permlane16_swap_b32 v%d, v%d" % (d + 1, d + 3))
                last = S("buffer_store_dwordx4 %s, v233, s[%d:%d], s35 offen offset:%d sc1" % (vr('v', d), sST, sST + 3, 2048 * tp))
            return last
        l = self.lab("par")
        S("s_cmp_lg_u32 s34, 0"); S("s_cbranch_scc1 %s" % l)
        st0 = (S.vm, S.vmdone, S.lg, S.lgdone, dict(S.pend), list(S.hist))
        variant(0)
        S("s_branch %s_e" % l); S(l + ":")
        S.vm, S.vmdone, S.lg, S.lgdone, S.pend, S.hist = st0
        last = variant(1)
        S(l + "_e:")
        S.wait(vm=last, lg=S.lg - 1); S.barrier()
        S("s_add_u32 s35, s%d, %d" % (sMB4, C4)); S("s_mul_i32 s35, s35, %d" % CSTR)
        self.signal(35)

    def p5_setup(self):
        S = self.S
        self.wdma_off(247, 2048, False, 244, 245); self.wdma_off(246, 2048, True, 244, 245)
        S("s_lshl_b32 s35, s%d, 7" % sNB); S("s_sub_u32 s36, %d, s35" % (3584 * 2048))
        self.srd(sW, P_WD, off=35, size="s36")
        S("s_lshl_b32 s40, s%d, 11" % sWV)
        S("s_add_u32 s42, s40, %d" % (160 * KB)); S("s_add_u32 s41, s40, %d" % self.p5_slot(0))
        S("s_mov_b32 s43, 0"); S("s_mov_b32 s44, %d" % (65536 - 1024))
        self.p5_id = {}
    def p5_slot(self, st): return ((st + self.o.get('p5_k0', 9)) % 10) * 16384
    def p5_dma(self, i):
        S = self.S
        if i >= 112: return
        h = i & 1; base = self.p5_slot(i >> 2) + ((i >> 1) & 1) * 8192
        if h == 0:
            S("s_mov_b32 m0, s41"); S("s_add_u32 s41, s41, 8192")
        else:
            S("s_add_u32 s43, s43, 0x20000")
        self.p5_id[i] = S.lds_fill("buffer_load_dwordx4 v%d, s[%d:%d], s%d offen offset:%d lds" % (246 if i % 7 == 3 else 247, sW, sW + 3, 43 + h, 1024 * h), base, base + 8192)
        if h == 1:
            S("s_add_u32 s44, s44, 0x20000")
            if i & 2: S("s_cmp_ge_u32 s41, s42"); S("s_cselect_b32 s41, s40, s41")
    def p5(self):
        S = self.S; o = self.o
        vCUR = 240; vW = 96; RING = 14
        nd = o.get('p5_pre', 16)
        if self.first == 5:
            self.p5_setup()
            for i in range(nd): self.p5_dma(i)
            for k in range(32): S("v_accvgpr_write_b32 a%d, 0" % (224 + k))
        S("s_lshl_b32 s34, s%d, 2" % sMB); S("s_add_u32 s34, s34, s%d" % sWV); S("s_lshl_b32 s52, s34, 11")
        S("s_mov_b32 s34, s52"); self.srd(sACT, P_WS, off=34, size=14 * MB, const=WS_HH)
        S("s_lshl_b32 s34, s52, 5"); S("s_lshl_b32 s35, s%d, 7" % sNB); S("s_add_u32 s34, s34, s35")
        self.srd(sST, P_OUT, off=34, size=65536 - 1920)
        S("s_mov_b32 s46, %d" % self.p5_slot(0)); S("s_mov_b32 s45, 0")
        for f in range(4): S("v_add_u32 v%d, s46, v%d" % (vCUR + f, vRB + f))
        LD = o.get('p5_ld', 24)
        while nd < LD: self.p5_dma(nd); nd += 1
        if self.sync_on(5):
            S("s_lshr_b32 s35, s%d, 1" % sMB); S("s_add_u32 s35, s35, %d" % C4); S("s_mul_i32 s35, s35, %d" % CSTR)
            self.poll(35, 32, 232)
        self.stamp()
        def act(n):
            if n >= 112: return
            for t in range(2):
                S("buffer_load_dwordx4 %s, v%d, s[%d:%d], s45 offen offset:%d sc1" % (vr('a', 8 * (n % RING) + 4 * t), vL16, sACT, sACT + 3, 1024 * t))
            S("s_add_u32 s45, s45, 0x20000")
        for n in range(RING - 1): act(n)
        rid = {}
        def rd(n, f, r):
            sl = self.p5_slot(n >> 2); ub = sl + ((n >> 1) & 1) * 8192
            rid[(n, f, r)] = self.trread(vr('v', vW + 4 * f + 2 * r, 2), vCUR, f, r, ub - sl + (n & 1) * 1024, ub)
        for k in range(32): S("v_mov_b32 v%d, 0" % k)
        S.wait(vm=self.p5_id[3]); S.barrier()
        for f in range(4):
            rd(0, f, 0); rd(0, f, 1)
        S.wait(lg=S.lg - 5)
        for n in range(112):
            if n % 28 == 0: S.newblock()
            reads = [(n + 1, f, r) for f in range(4) for r in range(2)] if n < 111 else []
            m = 0
            for f in range(4):
                for t in range(2):
                    if t == 0 and f in (0, 2): S.wait(lg=rid[(n, f + 1, 1)])
                    acc = (2 * f + t) * 4
                    S("%s %s, %s, %s, %s" % (MF, vr('v', acc), vr('v', vW + 4 * f), vr('a', 8 * (n % RING) + 4 * t), vr('v', acc)))
                    if (n & 3) == 3 and n < 111:
                        if m == 0:
                            S("s_add_u32 s46, s46, 16384"); S("s_cmp_ge_u32 s46, %d" % (160 * KB)); S("s_cselect_b32 s46, 0, s46")
                        if m == 1:
                            for ff in range(4): S("v_add_u32 v%d, s46, v%d" % (vCUR + ff, vRB + ff))
                            S.wait(vm=self.p5_id[n + 4]); S.barrier()
                    if reads and m >= 1 and (reads[0][1] < f or (reads[0][1] == f and t == 1)): rd(*reads.pop(0))
                    if m == 2: act(n + RING - 1)
                    if m == 5: self.p5_dma(nd); nd += 1
                    m += 1
            while reads: rd(*reads.pop(0))
        S.newblock()
        self.stamp()
        S("v_and_b32 v232, 15, v%d" % vLANE); S("v_lshlrev_b32 v246, 11, v232")
        S("v_bfe_u32 v233, v%d, 4, 1" % vLANE); S("v_lshl_add_u32 v246, v233, 5, v246")
        S("v_lshrrev_b32 v233, 5, v%d" % vLANE); S("v_lshl_add_u32 v246, v233, 4, v246")
        S("s_mov_b32 s54, 32768")
        for k in range(32): S("v_accvgpr_read_b32 v%d, a%d" % (32 + k, 224 + k))
        for t in range(2):
            for p in range(2):
                d = 64 + 8 * t + 4 * p
                for k in range(4):
                    acc = (2 * (2 * p + (k >> 1)) + t) * 4 + 2 * (k & 1)
                    S("v_pk_add_f32 v[%d:%d], v[%d:%d], v[%d:%d]" % (acc, acc + 1, acc, acc + 1, 32 + acc, 33 + acc))
                    S("v_cvt_pk_bf16_f32 v%d, v%d, v%d" % (d + k, acc, acc + 1))
                S("v_permlane16_swap_b32 v%d, v%d" % (d, d + 2)); S("v_permlane16_swap_b32 v%d, v%d" % (d + 1, d + 3))
                S("buffer_store_dwordx4 %s, v246, s[%d:%d], %s offen offset:%d" % (vr('v', d), sST, sST + 3, "s54" if t else "0", 64 * p))

    def dump_q(self):
        S = self.S
        S("s_lshl_b32 s34, s%d, 2" % sMB); S("s_add_u32 s34, s34, s%d" % sWV)
        S("s_lshl_b32 s34, s34, 1"); S("s_lshl_b32 s35, s%d, 8" % sNB); S("s_add_u32 s34, s34, s35"); S("s_lshl_b32 s34, s34, 10")
        self.srd(sST, P_WS, off=34, size=0x21000, const=WS_O)
        S("s_mov_b32 s55, 0x20000")
        for u in range(4):
            S("buffer_store_dwordx4 %s, v%d, s[%d:%d], %s offen offset:%d" % (vr('v', 144 + 4 * u), vL16, sST, sST + 3, "s55" if u >= 2 else "0", 1024 * (u & 1)))
    def build(self):
        S = self.S
        self.setup()
        for ph in range(self.first, self.last + 1):
            S.newblock()
            getattr(self, "p%d" % ph)()
        if self.last == 1: self.dump_q()
        if self.stamps:
            S.wait_vm0(); self.stamp(); S.wait_lg0()
            for k in (self.nst - 2, self.nst - 1): S("s_mov_b32 s%d, s%d" % (sSTAMP + k, 60 + 2 * (k & 1)))
            S("s_lshl_b32 s34, s2, 2"); S("s_add_u32 s34, s34, s%d" % sWV); S("s_lshl_b32 s34, s34, 6")
            self.srd(sM1, P_WS, off=34, size=64, const=WS_DBG)
            for i in range(self.nst):
                S("v_mov_b32 v0, s%d" % (sSTAMP + i))
                S("buffer_store_dword v0, v%d, s[%d:%d], 0 offen offset:%d" % (vZERO, sM1, sM1 + 3, 4 * i))
        errs = S.check_lds()
        assert errs == 0, "LDS race check failed"
        A = Asm()
        A._lab = 0
        A.raw(kernel_header(self.name))
        class AA:
            def __init__(s, A, name): s.A = A; s.name = name
            def newlabel(s, b): return s.name + "_" + s.A.newlabel(b)
            def __call__(s, t): s.A(t)
            def raw(s, t): s.A.raw(t)
            def label(s, t): s.A.label(t)
        S.emit(AA(A, self.name), sLOOP)
        A.label(self.name + "_done")
        A("s_endpgm")
        A.label(self.name + "_end")
        sc = self.o.get('ldsc', 'sc1')
        if sc != 'sc1':
            A.lines = [l.replace(' sc1', (' ' + sc).rstrip()) if 'buffer_load_dwordx4' in l else l for l in A.lines]
        return A.text(), kernel_desc(self.name, vgpr=512, accum=256)

def write(path, kernels, header=""):
    hdr = header + "".join("; @launch kernel=%s grid=(256,1,1) block=(256,1,1) lds=163840\n" % g.name for g in kernels)
    body = ""; desc = ""
    for g in kernels:
        b, d = g.build(); body += b; desc += d
        print(g.name, "instructions:", b.count("\n"), "nops:", g.S.nops, "stamps:", g.nst)
    open(path, "w").write(hdr + '.amdgcn_target "amdgcn-amd-amdhsa--gfx950"\n' + body + desc)

if __name__ == "__main__":
    ks = []
    for tg, nm in ((0, 'a'), (65536, 'b'), (8192, 'c')):
        ks += [G("t%d%s_kernel" % (p, nm), p, p, True, dict(touch=tg)) for p in (4, 5)]
        ks += [G("all%s_kernel" % nm, 0, 5, True, dict(touch=tg))]
    write("t.s", ks)
    build("t.s", "t.co")
```

```python
import re
from asmlib import *

_REG = re.compile(r'(?<![\w.])([vas])(?:(\d+)|\[(\d+):(\d+)\])(?![\w])')
TRANS = ('v_exp_f32', 'v_log_f32', 'v_rcp_f32', 'v_rsq_f32', 'v_sqrt_f32', 'v_sin_f32', 'v_cos_f32')

def regs(op):
    out = []
    op = op.strip()
    if op in ('vcc',): return [('s', 'vcc')]
    if op in ('exec',): return [('s', 'exec')]
    if op == 'm0': return [('s', 'm0')]
    for m in _REG.finditer(op):
        k = m.group(1)
        if m.group(2) is not None: out.append((k, int(m.group(2))))
        else: out += [(k, i) for i in range(int(m.group(3)), int(m.group(4)) + 1)]
    return out

class Ins:
    __slots__ = ('text', 'op', 'kind', 'wr', 'rd', 'srcc', 'ab', 'passes', 'states', 'wide')
    def __init__(self, text):
        self.text = text
        t = text.split(';')[0].strip()
        sp = t.split(None, 1)
        op = sp[0]; self.op = op
        rest = sp[1] if len(sp) > 1 else ''
        ops = [o.strip() for o in rest.split(',')] if rest else []
        self.wr = []; self.rd = []; self.srcc = []; self.ab = []; self.passes = 0; self.states = 1; self.wide = False
        base = re.sub(r'_(e32|e64|dpp|sdwa)$', '', op)
        if op.endswith(':') or op.startswith('.'):
            self.kind = 'label'; self.states = 0
        elif op.startswith('v_mfma'):
            self.kind = 'mfma'
            self.passes = 8 if '32x32' in op else 4
            self.wr = regs(ops[0]); self.ab = regs(ops[1]) + regs(ops[2]); self.srcc = regs(ops[3].split()[0])
            self.rd = self.ab + self.srcc
        elif op.startswith('v_'):
            self.kind = 'valu'
            if base in TRANS: self.kind = 'trans'
            if base.startswith('v_permlane'):
                self.kind = 'permlane'; self.wr = regs(ops[0]) + regs(ops[1]); self.rd = list(self.wr)
            elif base.startswith('v_cmp'):
                self.wr = regs(ops[0]); self.rd = sum((regs(o) for o in ops[1:]), [])
            elif base in ('v_readfirstlane_b32', 'v_readlane_b32'):
                self.kind = 'readlane'; self.wr = regs(ops[0]); self.rd = sum((regs(o) for o in ops[1:]), [])
            else:
                self.wr = regs(ops[0]); self.rd = sum((regs(o) for o in ops[1:]), [])
                if base in ('v_fmac_f32', 'v_pk_fmac_f16', 'v_dot2c_f32_bf16'): self.rd += self.wr
                if 'row_' in text or 'quad_perm' in text or op.endswith('_dpp'):
                    self.kind = 'dpp'; self.rd += self.wr
        elif op.startswith('ds_read'):
            self.kind = 'dsr'; self.wr = regs(ops[0]); self.rd = regs(ops[1].split()[0])
        elif op.startswith('ds_write'):
            self.kind = 'dsw'; self.rd = sum((regs(o.split()[0]) for o in ops), [])
        elif op.startswith('ds_bpermute') or op.startswith('ds_swizzle'):
            self.kind = 'dsr'; self.wr = regs(ops[0]); self.rd = sum((regs(o.split()[0]) for o in ops[1:]), [])
        elif op.startswith('buffer_') or op.startswith('global_'):
            words = t.replace(',', ' ').split()
            if op.startswith('buffer_load') and 'lds' in words:
                self.kind = 'dma'; self.rd = sum((regs(o.split()[0]) for o in ops), []) + [('s', 'm0')]
            elif '_load' in op:
                self.kind = 'vload'; self.wr = regs(ops[0]); self.rd = sum((regs(o.split()[0]) for o in ops[1:]), [])
            elif op in ('buffer_inv', 'buffer_wbl2'):
                self.kind = 'vmisc'
            else:
                self.kind = 'vstore'; self.rd = sum((regs(o.split()[0]) for o in ops), [])
                self.wide = op.endswith('x4') or op.endswith('x3')
                if self.wide:
                    self.ab = regs(ops[0]) if op.startswith('buffer') else regs(ops[1])
                if 'atomic' in op and 'sc0' in words: self.wr = regs(ops[0])
        elif op == 's_nop':
            self.kind = 'nop'; self.states = int(ops[0]) + 1
        elif op.startswith('s_load') or op.startswith('s_memtime') or op.startswith('s_memrealtime'):
            self.kind = 'smem'; self.wr = regs(ops[0]); self.rd = sum((regs(o) for o in ops[1:]), [])
        elif op.startswith('s_'):
            self.kind = 'salu'
            nodst = ('s_cmp', 's_waitcnt', 's_barrier', 's_cbranch', 's_branch', 's_sleep', 's_setprio', 's_endpgm', 's_bitcmp', 's_setpc')
            if op.startswith(nodst): self.rd = sum((regs(o) for o in ops), [])
            else: self.wr = regs(ops[0]); self.rd = sum((regs(o) for o in ops[1:]), [])
        else:
            raise ValueError("unknown instruction: " + text)

VALUK = ('valu', 'trans', 'permlane', 'readlane', 'dpp')
VMEMK = ('vload', 'vstore', 'dma')

def need_states(p, c):
    n = 0
    pw = set(p.wr); cr = set(c.rd); cw = set(c.wr)
    if p.kind in VALUK:
        vw = {r for r in pw if r[0] in 'va'}; sw = {r for r in pw if r[0] == 's'}
        if c.kind == 'mfma' and vw & cr: n = max(n, 2)
        if c.kind in ('permlane', 'dpp') and vw & cr: n = max(n, 2)
        if c.kind == 'readlane' and vw & cr: n = max(n, 1)
        if p.kind == 'trans' and c.kind in VALUK and c.kind != 'trans' and vw & cr: n = max(n, 1)
        if p.kind == 'trans' and c.kind == 'trans' and vw & cr: n = max(n, 1)
        if sw & cr:
            if c.kind in VALUK: n = max(n, 4 if c.kind == 'readlane' else 2)
            if c.kind in VMEMK: n = max(n, 5)
            if c.kind in ('salu', 'smem'): n = max(n, 1)
    if p.kind == 'mfma':
        big = p.passes == 8
        if c.kind == 'mfma':
            if pw & set(c.ab): n = max(n, 12 if big else 8)
            if pw & set(c.srcc) and not (list(p.wr) == list(c.srcc) and p.passes == c.passes): n = max(n, 10 if big else 6)
            if pw & cw and not (list(p.wr) == list(c.srcc)): n = max(n, 10 if big else 6)
        else:
            if pw & (cr | cw): n = max(n, 12 if big else 8)
            if c.kind in VALUK + ('dsr', 'vload') and set(p.srcc) & cw: n = max(n, 7 if big else 3)
    if p.kind == 'salu' and ('s', 'm0') in pw and c.kind == 'dma': n = max(n, 1)
    if p.kind == 'vstore' and p.wide and set(p.ab) & cw: n = max(n, 2)
    return n

class Stream:
    def __init__(self):
        self.blocks = [[]]
        self.vm = 0; self.vmdone = 0
        self.lg = 0; self.lgdone = 0
        self.hist = []
        self.pend = {}
        self.nops = 0
        self.log = []
    def newblock(self):
        self.blocks.append([])
    def _put(self, ins):
        self.blocks[-1].append(ins.text)
        self.hist.append(ins)
        if len(self.hist) > 24: self.hist.pop(0)
    def _one(self, text):
        ins = Ins(text)
        if ins.kind == 'label':
            self.blocks[-1].append(text); return ins
        vmw = None; lgw = None
        for r in ins.rd + ins.wr:
            p = self.pend.get(r)
            if p:
                if p[0] == 'vm' and p[1] >= self.vmdone: vmw = max(vmw if vmw is not None else -1, p[1])
                if p[0] == 'lg' and p[1] >= self.lgdone: lgw = max(lgw if lgw is not None else -1, p[1])
                if p[0] == 'sm': raise ValueError("scalar load result used without wait: " + text)
        if vmw is not None or lgw is not None: self.wait(vm=vmw, lg=lgw)
        need = 0; dist = 0
        for p in reversed(self.hist):
            need = max(need, need_states(p, ins) - dist)
            dist += p.states
            if dist > 20: break
        while need > 0:
            k = min(need, 16)
            self._put(Ins("s_nop %d" % (k - 1))); self.nops += k; need -= k
        self._put(ins)
        for r in ins.wr: self.pend.pop(r, None)
        if ins.kind in ('vload', 'vstore', 'dma', 'vmisc'):
            self.vm += 1
            for r in ins.wr: self.pend[r] = ('vm', self.vm - 1)
            return self.vm - 1
        if ins.kind in ('dsr', 'dsw'):
            self.lg += 1
            for r in ins.wr: self.pend[r] = ('lg', self.lg - 1)
            return self.lg - 1
        if ins.kind == 'smem':
            for r in ins.wr: self.pend[r] = ('sm', 0)
        return None
    def u(self, t):
        vm, lg, pend = self.vm, self.lg, dict(self.pend)
        self.e(t)
        self.vm, self.lg, self.pend = vm, lg, pend
    def stamp(self, sreg):
        self._put(Ins("s_memrealtime s[%d:%d]" % (sreg, sreg + 1)))
    def e(self, t):
        r = None
        for l in t.strip("\n").split("\n"):
            l = l.strip()
            if l: r = self._one(l)
        return r
    __call__ = e
    def wait(self, vm=None, lg=None):
        parts = []
        if vm is not None and vm >= self.vmdone:
            n = min(self.vm - vm - 1, 63)
            parts.append("vmcnt(%d)" % n); self.vmdone = self.vm - n
        if lg is not None and lg >= self.lgdone:
            n = min(self.lg - lg - 1, 15)
            assert not any(p[0] == 'sm' for p in self.pend.values()) or n == 0, "counted lgkm wait with smem outstanding"
            parts.append("lgkmcnt(%d)" % n); self.lgdone = self.lg - n
        if parts:
            self._put(Ins("s_waitcnt " + " ".join(parts)))
            self.log.append(('wait', self.vmdone, self.lgdone))
    def wait_lg0(self):
        self._put(Ins("s_waitcnt lgkmcnt(0)")); self.lgdone = self.lg
        for r in [r for r, p in self.pend.items() if p[0] == 'sm']: del self.pend[r]
        self.log.append(('wait', self.vmdone, self.lgdone))
    def wait_vm0(self):
        self._put(Ins("s_waitcnt vmcnt(0)")); self.vmdone = self.vm
        self.log.append(('wait', self.vmdone, self.lgdone))
    def barrier(self):
        self._put(Ins("s_barrier")); self.log.append(('bar',))
    def lds_fill(self, text, lo, hi):
        i = self.e(text)
        self.log.append(('fill', 'vm' if ' lds' in text else 'lg', i, lo, hi, text)); return i
    def lds_read(self, text, lo, hi, own=False):
        i = self.e(text)
        self.log.append(('read', i, lo, hi, text, own)); return i
    def check_lds(self):
        fills = []; reads = []
        errs = 0
        for ev in self.log:
            if ev[0] == 'wait':
                for f in fills:
                    if f[4] == 0 and ((f[2] == 'vm' and f[3] < ev[1]) or (f[2] == 'lg' and f[3] < ev[2])): f[4] = 1
                for r in reads:
                    if r[4] == 0 and r[3] < ev[2]: r[4] = 1
            elif ev[0] == 'bar':
                for f in fills:
                    if f[4] == 1: f[4] = 2
                reads = [r for r in reads if r[4] == 0]
            elif ev[0] == 'fill':
                _, k, i, lo, hi, text = ev
                for r in reads:
                    if r[0] < hi and lo < r[1]:
                        print("LDS WAR:", text, lo, hi, "vs read", r[5]); errs += 1; break
                for f in fills:
                    if f[0] < hi and lo < f[1] and f[4] < 2 and (f[0], f[1]) != (lo, hi):
                        print("LDS WAW:", text, lo, hi, "vs", f[:2]); errs += 1; break
                fills = [f for f in fills if not (lo <= f[0] and f[1] <= hi)]
                fills.append([lo, hi, k, i, 0])
            elif ev[0] == 'read':
                _, i, lo, hi, text, own = ev
                cov = [(f[0], f[1]) for f in fills if f[0] < hi and lo < f[1]]
                bad = [f for f in fills if f[0] < hi and lo < f[1] and f[4] < (1 if own else 2)]
                if bad: print("LDS RAW:", text, lo, hi, "unpublished fill", bad[0][:5]); errs += 1
                cov.sort(); pos = lo
                for a_, b_ in cov:
                    if a_ <= pos: pos = max(pos, b_)
                if pos < hi: print("LDS read of never-filled bytes:", text, lo, hi, pos); errs += 1
                reads.append([lo, hi, 'lg', i, 0, text])
        return errs
    def emit(self, A, cnt_sreg, fold=True):
        i = 0; B = [b for b in self.blocks if b]
        while i < len(B):
            j = i
            while fold and j + 1 < len(B) and B[j + 1] == B[i]:
                j += 1
            n = j - i + 1
            if n > 1:
                lab = A.newlabel("loop")
                A("s_mov_b32 s%d, %d" % (cnt_sreg, n))
                A.raw(".p2align 3")
                A.label(lab)
                for l in B[i]: A(l)
                A("s_sub_u32 s%d, s%d, 1" % (cnt_sreg, cnt_sreg))
                A("s_cmp_lg_u32 s%d, 0" % cnt_sreg)
                A("s_cbranch_scc1 %s" % lab)
            else:
                for l in B[i]: A(l)
            i = j + 1
```

```python
import sys, json
from gen_all import *
NAME = "sequential_preLN__sliding_block__glu_gated_glu__prompt"
def final(path, opt=None, stamps=False):
    ref = open("cdna_kernels/%s.s.ref" % NAME).read().split("\n")
    hdr = [l for l in ref if l.startswith(";") and "@launch" not in l and not l.startswith("; Override") and not l.startswith("; grid=")]
    g = G(NAME + "_kernel", 0, 5, stamps, opt)
    b, d = g.build()
    b = b.replace(NAME + "_kernel_", "L_")
    txt = "\n".join(hdr) + "\n; @launch grid=(256,1,1) block=(256,1,1) lds=163840\n" \
        + "; One persistent launch, one workgroup per CU.  Phases: LN1 -> QKV -> sliding attention -> Wo + residual -> LN2 + GLU -> down + residual.\n" \
        + "; Workgroups hand tiles over through d_ws (write-through stores, counters zeroed by workgroup 0 and announced through d_debug).\n" \
        + "; Generated by the author's own scripts.\n" \
        + '.amdgcn_target "amdgcn-amd-amdhsa--gfx950"\n' + b + d
    open(path, "w").write(txt)
    print(path, len(txt), "bytes; nops", g.S.nops)
if __name__ == "__main__":
    opt = json.loads(sys.argv[2]) if len(sys.argv) > 2 else {}
    final(sys.argv[1] if len(sys.argv) > 1 else "cdna_kernels/%s.s" % NAME, opt)
```
